```python
import torch

def _softmax(x, axis=-1):
    return torch.softmax(x, dim=axis)
def _gelu(x):
    return torch.nn.functional.gelu(x, approximate="tanh")
def _silu(x):
    return torch.nn.functional.silu(x)
def _sigmoid(x):
    return torch.sigmoid(x)
def _layernorm(x, axis=-1, eps=1e-5):
    m = x.mean(dim=axis, keepdim=True)
    v = x.var(dim=axis, keepdim=True, unbiased=False)
    return (x - m) / torch.sqrt(v + eps)
def _scatter_add(tgt, idx, src, axis=0):
    return tgt.clone().index_add_(axis, idx, src)
def _segment_sum(src, seg, n):
    out = torch.zeros((n,) + src.shape[1:], dtype=src.dtype)
    return out.index_add_(0, seg, src)
def _pad(x, pw):
    flat = tuple(v for pair in reversed(pw) for v in pair)
    return torch.nn.functional.pad(x, flat)

kernel_name = 'standalone__gqa_block_cached__near_ridge'

def setup_inputs():

    _w = (lambda a: (lambda t: t.to(torch.bfloat16) if t.is_floating_point() else t)(torch.as_tensor(a)))
    B, Sq, D = 16, 48, 576
    Hq, Hkv, Sk, Dh = 32, 16, 48, 128
    assert Hq % Hkv == 0, (Hq, Hkv)
    return {
        "x": _w((lambda *s: torch.randn(*s, dtype=torch.bfloat16) * 0.8)(B, Sq, D)),
        "k_cache": _w((lambda *s: torch.randn(*s, dtype=torch.bfloat16) * 0.8)(B, Hkv, Sk, Dh)),
        "v_cache": _w((lambda *s: torch.randn(*s, dtype=torch.bfloat16) * 0.05)(B, Hkv, Sk, Dh)),
        "wq": _w((lambda *s: torch.randn(*s, dtype=torch.bfloat16) * 0.8)(D, Hq * Dh) * (D ** -0.5)),
        "wo": _w((lambda *s: torch.randn(*s, dtype=torch.bfloat16) * 0.05)(Hq * Dh, D) * ((Hq * Dh) ** -0.5)),
    }

def reference(x, k_cache, v_cache, wq, wo):
    B, Sq, D = x.shape
    Hq, Dh = 32, 128
    Hkv = k_cache.shape[1]
    rep = Hq // Hkv
    q = (lambda x, *d: x.permute(*d))((x @ wq).reshape(B, Sq, Hq, Dh), 0, 2, 1, 3)
    k = (lambda x, n, axis: torch.repeat_interleave(x, n, dim=axis))(k_cache, rep, axis=1)
    v = (lambda x, n, axis: torch.repeat_interleave(x, n, dim=axis))(v_cache, rep, axis=1)
    scores = torch.einsum("bhqd,bhkd->bhqk", q, k) * (Dh ** -0.5)
    p = _softmax(scores, axis=-1)
    o = torch.einsum("bhqk,bhkd->bhqd", p, v)
    return (lambda x, *d: x.permute(*d))(o, 0, 2, 1, 3).reshape(B, Sq, Hq * Dh) @ wo
```

```python
import re
HEADER = """; Kernarg layout for this problem (64 bytes, ptrs only, base s[0:1]):
;   offset  16: d_in[2] v_cache  shape=(16, 16, 48, 128) dtype=bfloat16 strides=(196608, 12288, 256, 2) contiguous=True
"""
SZ = dict(x=16*48*576*2, k=16*16*48*128*2, v=16*16*48*128*2, wq=576*4096*2, wo=4096*576*2, out=16*48*576*2, dbg=256, ws=268435456)
OFF = dict(x=0, k=8, v=16, wq=24, wo=32, out=40, dbg=48, ws=56)
STAMP_OFF = 128 << 20
KN = "standalone__gqa_block_cached__near_ridge_kernel"

class I:
    def __init__(self, text, tag=None, maybe=False):
        self.text = text.strip(); self.tag = tag; self.maybe = maybe
class W:
    def __init__(self, vm=None, lg=None):
        self.vm = vm; self.lg = lg

def vr(a, n=1, p="v"):
    return f"{p}{a}" if n == 1 else f"{p}[{a}:{a+n-1}]"
def ar(a, n=1): return vr(a, n, "a")
def sr(a, n=1): return vr(a, n, "s")

def interleave(main, fill, start=0, every=1, per=1):
    out = []; fill = list(fill); k = 0
    for i, m in enumerate(main):
        out.append(m)
        if i >= start and (i - start) % every == 0:
            out += fill[k:k+per]; k += per
    out += fill[k:]
    return out

_REG = re.compile(r"(?<![\w.])([vas])(?:(\d+)|\[(\d+):(\d+)\])(?![\w])")
def regs(s):
    out = set()
    for p, one, lo, hi in _REG.findall(s):
        if one: out.add((p, int(one)))
        else: out |= {(p, i) for i in range(int(lo), int(hi) + 1)}
    if re.search(r"\bvcc\b", s): out.add(("s", "vcc"))
    if re.search(r"\bm0\b", s): out.add(("s", "m0"))
    if re.search(r"\bexec\b", s): out.add(("s", "exec"))
    return out

TRANS = ("v_exp_f32", "v_log_f32", "v_rcp_f32", "v_rsq_f32", "v_sqrt_f32", "v_sin_f32", "v_cos_f32")
class Dec:
    def __init__(self, text):
        t = text.split(";")[0].strip()
        self.text = t
        parts = t.split(None, 1)
        self.op = parts[0]; ops = [o.strip() for o in parts[1].split(",")] if len(parts) > 1 else []
        op = self.op
        self.mfma = op.startswith("v_mfma")
        self.valu = op.startswith("v_") and not self.mfma
        self.salu = op.startswith("s_")
        self.ds = op.startswith("ds_")
        self.vmem = op.startswith(("buffer_", "global_"))
        self.lds_dma = self.vmem and re.search(r"\blds\b", t) is not None
        self.trans = op.startswith(TRANS)
        self.perml = op.startswith("v_permlane")
        self.dpp = "dpp" in op or "row_" in t or "quad_perm" in t
        self.rdlane = op.startswith(("v_readfirstlane", "v_readlane"))
        self.states = int(ops[0], 0) + 1 if op == "s_nop" else 1
        self.srcC = set(); self.srcAB = set(); self.stdata = set()
        w = set(); r = set()
        if self.mfma:
            w = regs(ops[0]); self.srcAB = regs(ops[1]) | regs(ops[2]); self.srcC = regs(ops[3]); r = self.srcAB | self.srcC
            self.passes = 8 if "32x32" in op else 4
        elif self.valu:
            w = regs(ops[0]); r = set().union(*[regs(o) for o in ops[1:]]) if len(ops) > 1 else set()
            if self.perml: w |= regs(ops[1]); r |= regs(ops[0])
            if op.startswith(("v_fmac", "v_dot2c", "v_writelane")) : r |= regs(ops[0])
            if "_co_" in op: w |= regs(ops[1])
            if op.startswith("v_cmpx"): w.add(("s", "exec"))
        elif self.ds:
            if op.startswith(("ds_read", "ds_bpermute", "ds_permute", "ds_swizzle")):
                w = regs(ops[0]); r = set().union(*[regs(o) for o in ops[1:]])
            else:
                r = set().union(*[regs(o) for o in ops])
        elif self.vmem:
            allr = [regs(o) for o in ops]
            if self.lds_dma: r = set().union(*allr) | {("s", "m0")}
            elif "load" in op: w = allr[0]; r = set().union(*allr[1:])
            else:
                r = set().union(*allr) if allr else set()
                if re.search(r"dwordx[34]", op):
                    self.stdata = allr[0] if op.startswith("buffer_") else allr[1]
                if "atomic" in op and re.search(r"\bsc0\b", t): w = allr[0]
        elif self.salu and ops:
            if op.startswith(("s_cmp", "s_cbranch", "s_branch", "s_waitcnt", "s_nop", "s_setprio", "s_sleep", "s_barrier", "s_bitcmp")):
                r = set().union(*[regs(o) for o in ops])
            else:
                w = regs(ops[0]); r = set().union(*[regs(o) for o in ops[1:]]) if len(ops) > 1 else set()
                if "saveexec" in op: w.add(("s", "exec"))
        self.w = w; self.r = r

def need(p, c):
    n = 0
    V = lambda s: {x for x in s if x[0] in "va"}
    S = lambda s: {x for x in s if x[0] == "s"}
    if p.valu:
        vw = V(p.w); sw = S(p.w)
        if c.mfma and vw & c.r: n = max(n, 2)
        if c.perml and vw & c.r: n = max(n, 2)
        if c.dpp and vw & c.r: n = max(n, 2)
        if c.rdlane and vw & c.r: n = max(n, 1)
        if p.trans and c.valu and vw & (c.r | c.w): n = max(n, 1)
        if c.vmem and sw & c.r: n = max(n, 5)
        if c.valu and sw & c.r: n = max(n, 4 if c.op.startswith(("v_readlane", "v_writelane")) else 2)
        if c.salu and sw & c.r: n = max(n, 2)
        if ("s", "exec") in sw and (c.mfma or c.perml or c.rdlane): n = max(n, 4)
        if ("s", "exec") in sw and c.dpp: n = max(n, 5)
        if "op_sel" in p.text and not p.op.startswith("v_pk") and c.valu and vw & c.r: n = max(n, 1)
    if p.mfma:
        big = {4: 8, 8: 12}[p.passes]
        if c.mfma:
            if p.w & c.srcAB: n = max(n, big)
            if p.w & c.srcC and not (p.w == c.srcC and p.passes == c.passes): n = max(n, {4: 6, 8: 10}[p.passes])
            if p.w & c.w and not (p.w & c.srcC): n = max(n, big)
        elif (c.valu or c.ds or c.vmem) and p.w & (c.r | c.w): n = max(n, big)
        if (c.valu or c.ds or c.vmem) and p.srcC & c.w: n = max(n, {4: 3, 8: 7}[p.passes])
    if p.salu and ("s", "m0") in p.w and c.lds_dma: n = max(n, 1)
    if p.stdata and p.stdata & c.w: n = max(n, 2)
    return n

class Asm:
    def __init__(self):
        self.items = []
        self.kernels = []
        self.nlabel = 0
        self.nops = 0
    def __call__(self, s="", tag=None, maybe=False):
        if isinstance(s, (list, tuple)):
            for x in s: self(x)
            return
        if isinstance(s, (I, W)):
            self.items.append(s); return
        for l in s.split("\n"):
            l = l.strip()
            if l: self.items.append(I(l, tag, maybe))
    def label(self, base="L"):
        self.nlabel += 1
        return f"{base}_{self.nlabel}"
    def begin_kernel(self, name, grid, block, lds, vgpr, accum, sgpr=96):
        self.kernels.append((name, grid, block, lds, vgpr, sgpr, accum))
        self(f".globl {name}\n.p2align 8\n.type {name},@function\n{name}:")
    def srd(self, d, base, nbytes):
        if d != base:
            self(f"s_mov_b32 s{d}, s{base}\ns_mov_b32 s{d+1}, s{base+1}")
        self(f"s_mov_b32 s{d+2}, {nbytes}\ns_mov_b32 s{d+3}, 0x00020000")
    def resolve(self):
        vmq = []; lgq = []; out = []
        vm_known = 64; lg_known = 16
        for it in self.items:
            if isinstance(it, W):
                parts = []
                for q, tag, name, mx in ((vmq, it.vm, "vmcnt", 63), (lgq, it.lg, "lgkmcnt", 15)):
                    if tag is None: continue
                    if tag == 0: n = 0
                    else:
                        idx = [i for i, (t, mb) in enumerate(q) if t == tag]
                        assert idx, f"wait on unknown tag {tag}"
                        n = sum(1 for (t, mb) in q[idx[-1]+1:] if not mb)
                        n = min(n, mx)
                    parts.append(f"{name}({n})")
                out.append("s_waitcnt " + " ".join(parts)); continue
            t = it.text
            op = t.split()[0]
            if op.endswith("_kernel:"): vmq = []; lgq = []
            if op.startswith(("buffer_", "global_")): vmq.append((it.tag, it.maybe))
            elif op.startswith("ds_"): lgq.append((it.tag, it.maybe))
            out.append(t)
        return out
    def pad(self, lines):
        out = []; hist = []
        for l in lines:
            if l.startswith(".") or l.endswith(":") or l.startswith(";"):
                out.append(l); continue
            d = Dec(l)
            dist = 0; req = 0
            for p in reversed(hist):
                req = max(req, need(p, d) - dist)
                dist += p.states
                if dist > 20: break
            if req > 0:
                nop = f"s_nop {req-1}"
                out.append("    " + nop); hist.append(Dec(nop)); self.nops += req
            out.append("    " + l); hist.append(d)
        return out
    def text(self, launches=None, comments=""):
        out = [HEADER.rstrip("\n")]
        if comments:
            out += ["; " + c for c in comments.strip().split("\n")]
        if launches is None: launches = [k[0] for k in self.kernels]
        byname = {k[0]: k for k in self.kernels}
        if len(launches) == 1 and launches[0] == KN:
            n, g, b, lds, *_ = byname[launches[0]]
            out.append(f"; @launch grid=({g},1,1) block=({b},1,1) lds={lds}")
        else:
            for nme in launches:
                n, g, b, lds, *_ = byname[nme]
                out.append(f"; @launch kernel={n} grid=({g},1,1) block=({b},1,1) lds={lds}")
        out.append('.amdgcn_target "amdgcn-amd-amdhsa--gfx950"')
        out.append(".text")
        out += self.pad(self.resolve())
        out.append('.section .rodata,"a"')
        for n, g, b, lds, vgpr, sgpr, accum in self.kernels:
            out.append(f""".p2align 6
.amdhsa_kernel {n}
  .amdhsa_next_free_vgpr {vgpr}
  .amdhsa_next_free_sgpr {sgpr}
  .amdhsa_accum_offset {accum}
  .amdhsa_group_segment_fixed_size 0
  .amdhsa_kernarg_size 64
  .amdhsa_user_sgpr_count 2
  .amdhsa_user_sgpr_kernarg_segment_ptr 1
  .amdhsa_system_sgpr_workgroup_id_x 1
.end_amdhsa_kernel""")
        return "\n".join(out) + "\n"

def stamp(a, i):
    a(f"s_memrealtime s[{64+2*i}:{65+2*i}]")
def store_stamps(a, lo, hi, ws_srd, s_wave, s_tmp, wave=0):
    L = a.label("nostamp")
    a(f"s_waitcnt lgkmcnt(0)\ns_cmp_lg_u32 s{s_wave}, {wave}\ns_cbranch_scc1 {L}")
    a(f"s_lshl_b32 s{s_tmp}, s2, 7\ns_add_u32 s{s_tmp}, s{s_tmp}, {STAMP_OFF}\nv_mov_b32 v1, 0\ns_mov_b64 exec, 1")
    for i in range(lo, hi):
        a(f"v_mov_b32 v2, s{64+2*i}\nv_mov_b32 v3, s{65+2*i}")
        a(f"buffer_store_dwordx2 v[2:3], v1, s[{ws_srd}:{ws_srd+3}], s{s_tmp} offen offset:{8*i}\ns_nop 1")
    a(f"{L}:")
```

```python
import sys
sys.path.insert(0, "gen")
from asmlib import *

XB = 0
SB = 0
KB = 55296
VB = KB + 12288
RB = VB + 12288
NS = 5
LDS = RB + 4*NS*4096
assert LDS <= 163840
sX, sK, sV, sWQ, sWO, sWS = 20, 24, 28, 32, 36, 40
sW, sG, sB_, sT0, sT1, sT2 = 44, 45, 46, 47, 48, 49
sWQoff, sWOoff, sRing, sKV, sScale, sPart, sXoff = 50, 51, 52, 53, 54, 55, 56
vXsrc, vKsrc, vVsrc, vLin = 1, 2, 3, 4
vWq = 5
vWo = 9
vTr = 13
vXrd = 17
vKrd = 19
vVrd = 23
vTr8 = 27
vSw, vSr = 29, 30
vSt8 = 31
T = 32
WF = 40
XF = 72
ACC = 96
QF = 144
S1 = 168
S2 = 204
PF = 204
SUM = 228
ONES = 240
ACC8 = 244
ACC2 = 168
W8 = 216
aOF = 0
aKF = 96
aVF = 120
aW8 = 144

def mfma(d, a_, b_, c=None):
    return I(f"v_mfma_f32_16x16x32_bf16 {d}, {a_}, {b_}, {c if c is not None else d}")

def k1(a, P):
    ST = P.get("stamps")
    sp = P.get("spol", "nt")
    a.begin_kernel("gqa_main_kernel", 256, 256, LDS, 256 + 176, 256)
    if ST: stamp(a, 0)
    a("s_cmp_ge_u32 s2, 256\ns_cbranch_scc1 L_end1")
    for s, n in ((sX, "x"), (sWQ, "wq"), (sK, "k"), (sV, "v"), (sWO, "wo"), (sWS, "ws")):
        a(f"s_load_dwordx2 s[{s}:{s+1}], s[0:1], {OFF[n]}")
    a(f"s_getpc_b64 s[58:59]\nv_lshlrev_b32 v{T}, 7, v0")
    if P.get("codepf", 1):
        a(f"v_min_u32 v{T}, {P.get('codebytes', 16384)}, v{T}")
        a(f"global_load_dword v{T+1}, v{T}, s[58:59]", tag="pf")
    for s, n in ((sX, "x"), (sK, "k"), (sV, "v"), (sWQ, "wq"), (sWO, "wo"), (sWS, "ws")):
        a(f"s_mov_b32 s{s+2}, {SZ[n]}\ns_mov_b32 s{s+3}, 0x00020000")
    a(f"v_lshrrev_b32 v{T+2}, 6, v0\nv_and_b32 v0, 63, v0")
    a(f"v_readfirstlane_b32 s{sW}, v{T+2}")
    a(f"s_and_b32 s{sG}, s2, 7\ns_lshl_b32 s{sG}, s{sG}, 1\ns_bfe_u32 s{sT0}, s2, 0x10003\ns_or_b32 s{sG}, s{sG}, s{sT0}\ns_lshr_b32 s{sB_}, s2, 4")
    r, p = T+2, T+3
    a(f"v_lshrrev_b32 v{r}, 3, v0\nv_and_b32 v{p}, 7, v0")
    a(f"s_and_b32 s{sT0}, s{sW}, 1\ns_lshl_b32 s{sT1}, s{sT0}, 2")
    a(f"v_lshrrev_b32 v{T+4}, 1, v{r}\nv_or_b32 v{T+5}, s{sT1}, v{T+4}\nv_xor_b32 v{T+5}, v{T+5}, v{p}\nv_lshlrev_b32 v{T+5}, 4, v{T+5}")
    a(f"s_mul_i32 s{sT1}, s{sT0}, 9216\nv_mul_u32_u24 v{T+6}, 1152, v{r}\nv_add3_u32 v{vXsrc}, v{T+5}, v{T+6}, s{sT1}")
    if P.get("rot", 1):
        a(f"s_cmp_ge_u32 s{sB_}, 9\ns_cselect_b32 s{sT1}, 9, 0\ns_sub_u32 s{sT2}, s{sB_}, s{sT1}")
    else:
        a(f"s_mov_b32 s{sT2}, 0")
    a(f"s_lshl_b32 s{sWQoff}, s{sT2}, 19")
    a(f"s_lshr_b32 s{sT1}, s{sW}, 1\ns_add_u32 s{sT2}, s{sT2}, s{sT1}\ns_cmp_ge_u32 s{sT2}, 9\ns_cselect_b32 s{sXoff}, 9, 0\ns_sub_u32 s{sT2}, s{sT2}, s{sXoff}")
    a(f"s_lshl_b32 s{sXoff}, s{sT2}, 7")
    a(f"s_mul_i32 s{sT2}, s{sB_}, 55296")
    a(f"v_add_u32 v{vXsrc}, s{sT2}, v{vXsrc}")
    a(f"v_add_u32 v{T+6}, {18432-2048}, v{vXsrc}\nv_add_u32 v{T+7}, 36864, v{vXsrc}")
    a(f"s_mul_i32 s{sT1}, s{sT1}, 6144\ns_lshl_b32 s{sT0}, s{sT0}, 10\ns_add_u32 s{sT0}, s{sT0}, s{sT1}")
    a(f"v_and_b32 v{T+4}, 2, v{r}\nv_xor_b32 v{T+4}, v{T+4}, v{p}\nv_lshlrev_b32 v{T+4}, 4, v{T+4}")
    a(f"s_lshl_b32 s{sT1}, s{sG}, 9\ns_lshl_b32 s{sT2}, s{sW}, 7\ns_add_u32 s{sT1}, s{sT1}, s{sT2}")
    a(f"v_lshlrev_b32 v{T+5}, 13, v{r}\nv_add3_u32 v{vWq}, v{T+4}, v{T+5}, s{sT1}")
    a(f"v_xor_b32 v{vWq+1}, 64, v{vWq}")
    a(f"v_add_u32 v{vWq+2}, {2*(65536-1024)}, v{vWq}\nv_add_u32 v{vWq+3}, {3*(65536-1024)}, v{vWq+1}\nv_add_u32 v{vWq+1}, {65536-1024}, v{vWq+1}")
    a(f"s_mul_i32 s{sRing}, s{sW}, {NS*4096}\ns_add_u32 s{sRing}, s{sRing}, {RB}")
    a(W(lg=0))
    if ST: stamp(a, 1)
    for i in range(5):
        mb = i == 4
        if mb:
            a(f"s_cmp_ge_u32 s{sW}, 2\ns_cbranch_scc1 L_xdone")
        a(f"s_add_u32 m0, s{sT0}, {XB + i*12288}")
        a(f"buffer_load_dwordx4 v{vXsrc}, s[{sX}:{sX+3}], s{sXoff} offen lds", tag="x", maybe=mb)
        a(f"buffer_load_dwordx4 v{T+6}, s[{sX}:{sX+3}], s{sXoff} offen offset:2048 lds", tag="x", maybe=mb)
        a(f"s_add_u32 m0, s{sT0}, {XB + i*12288 + 4096}")
        a(f"buffer_load_dwordx4 v{T+7}, s[{sX}:{sX+3}], s{sXoff} offen lds", tag="x", maybe=mb)
        if i < 4:
            a(f"s_add_u32 s{sXoff}, s{sXoff}, 256\ns_cmp_ge_u32 s{sXoff}, 1152\ns_cselect_b32 s{sT1}, 1152, 0\ns_sub_u32 s{sXoff}, s{sXoff}, s{sT1}")
    a("L_xdone:")

    def dma_block(j):
        out = []
        slot = j % NS
        out.append(I(f"s_add_u32 m0, s{sRing}, {slot*4096}"))
        if j < 18:
            for n in range(4):
                out.append(I(f"buffer_load_dwordx4 v{vWq+n}, s[{sWQ}:{sWQ+3}], s{sWQoff} offen offset:{1024*n} lds", tag=f"b{j}"))
            if j < 17:
                out.append(I(f"s_add_u32 s{sWQoff}, s{sWQoff}, {32*8192}"))
                if j % 2 == 1:
                    out.append(I(f"s_cmp_eq_u32 s{sWQoff}, {576*8192}"))
                    out.append(I(f"s_cselect_b32 s{sWQoff}, 0, s{sWQoff}"))
        else:
            if j == 18:
                out.append(I(f"s_mul_i32 s{sWOoff}, s{sW}, {64*1152}"))
                out.append(I(f"s_add_u32 s{sWOoff}, s{sWOoff}, 1024"))
            elif j == 20:
                out.append(I(f"s_lshl_b32 s{sWOoff}, s{sW}, 7"))
            elif j == 28:
                out.append(I(f"s_lshl_b32 s{sWOoff}, s{sW}, 7"))
                out.append(I(f"s_add_u32 s{sWOoff}, s{sWOoff}, 512"))
            else:
                out.append(I(f"s_add_u32 s{sWOoff}, s{sWOoff}, {32*1152}"))
            for n in range(4):
                out.append(I(f"buffer_load_dwordx4 v{vWo+n}, s[{sWO}:{sWO+3}], s{sWOoff} offen offset:{1024*n} lds", tag=f"b{j}"))
        return out

    for j in range(NS): a(dma_block(j))
    q, m = T+4, T+5
    a(f"v_lshrrev_b32 v{q}, 4, v0\nv_and_b32 v{m}, 15, v0")
    a(f"s_lshl_b32 s{sT0}, s{sW}, 2\nv_or_b32 v{T+6}, s{sT0}, v{q}\nv_xor_b32 v{T+6}, v{T+6}, v{m}\nv_lshlrev_b32 v{T+6}, 4, v{T+6}")
    a(f"v_lshl_add_u32 v{vKsrc}, v{q}, 8, v{T+6}")
    a(f"s_lshl_b32 s{sKV}, s{sB_}, 4\ns_add_u32 s{sKV}, s{sKV}, s{sG}\ns_mul_i32 s{sPart}, s{sKV}, 55296\ns_mul_i32 s{sKV}, s{sKV}, 12288")
    a(f"s_lshl_b32 s{sT0}, s{sW}, 10")
    for i in range(3):
        a(f"s_add_u32 s{sT1}, s{sKV}, s{sT0}\ns_add_u32 m0, s{sT0}, {KB}")
        a(f"buffer_load_dwordx4 v{vKsrc}, s[{sK}:{sK+3}], s{sT1} offen lds", tag="kv")
        if i < 2: a(f"s_add_u32 s{sT0}, s{sT0}, 4096")
    a(f"v_and_b32 v{T+6}, 6, v{r}\nv_xor_b32 v{T+6}, v{T+6}, v{p}\nv_lshlrev_b32 v{T+6}, 4, v{T+6}\nv_lshl_add_u32 v{vVsrc}, v{r}, 8, v{T+6}")
    a(f"s_and_b32 s{sT0}, s{sW}, 1\ns_lshr_b32 s{sT1}, s{sW}, 1")
    a(f"s_lshl_b32 s{sT2}, s{sT0}, 7\ns_add_u32 s{sKV}, s{sKV}, s{sT2}\ns_mul_i32 s{sT2}, s{sT1}, 6144\ns_add_u32 s{sKV}, s{sKV}, s{sT2}")
    a(f"s_mul_i32 s{sT0}, s{sT0}, 6144\ns_mul_i32 s{sT1}, s{sT1}, 3072\ns_add_u32 s{sT0}, s{sT0}, s{sT1}")
    for i in range(3):
        a(f"s_add_u32 m0, s{sT0}, {VB + i*1024}\ns_add_u32 s{sT1}, s{sKV}, {i*2048}")
        a(f"buffer_load_dwordx4 v{vVsrc}, s[{sV}:{sV+3}], s{sT1} offen lds", tag="kv")
    if P.get("wopf", 1):
        a(f"s_mul_i32 s{sT0}, s{sG}, {256*1152}\ns_mul_i32 s{sT1}, s{sB_}, {144*128}\ns_add_u32 s{sT0}, s{sT0}, s{sT1}\ns_mul_i32 s{sT1}, s{sW}, {36*128}\ns_add_u32 s{sT0}, s{sT0}, s{sT1}")
        a(f"v_min_u32 v{T+6}, 35, v0\nv_lshlrev_b32 v{T+6}, 7, v{T+6}")
        a(f"buffer_load_dword v{T+1}, v{T+6}, s[{sWO}:{sWO+3}], s{sT0} offen", tag="pf")
    a(f"v_and_b32 v{T+6}, 2, v{r}\nv_xor_b32 v{T+6}, v{T+6}, v{p}\nv_lshlrev_b32 v{T+6}, 4, v{T+6}")
    a(f"v_lshrrev_b32 v{T+7}, 2, v{r}\nv_lshlrev_b32 v{T+7}, 4, v{T+7}\nv_and_b32 v{vWo+1}, 3, v{r}\nv_add_u32 v{T+7}, v{T+7}, v{vWo+1}\nv_mul_u32_u24 v{T+7}, 1152, v{T+7}")
    a(f"s_mul_i32 s{sT0}, s{sG}, {256*1152}")
    a(f"v_add3_u32 v{vWo}, v{T+6}, v{T+7}, s{sT0}\nv_xor_b32 v{vWo+1}, 64, v{vWo}")
    a(f"v_add_u32 v{vWo+2}, {2*(4608-1024)}, v{vWo}\nv_add_u32 v{vWo+3}, {3*(4608-1024)}, v{vWo+1}\nv_add_u32 v{vWo+1}, {4608-1024}, v{vWo+1}")
    rr, s_ = T+2, T+3
    a(f"v_bfe_u32 v{rr}, v0, 2, 2\nv_bfe_u32 v{s_}, v0, 3, 2")
    a(f"v_and_b32 v{T+6}, 3, v0\nv_lshlrev_b32 v{T+6}, 3, v{T+6}\nv_lshl_add_u32 v{T+6}, v{s_}, 5, v{T+6}\nv_lshl_add_u32 v{T+6}, v{rr}, 7, v{T+6}")
    a(f"v_lshl_add_u32 v{T+7}, v{q}, 10, v{T+6}")
    for t in range(4):
        a(f"v_xor_b32 v{vTr+t}, {32*t}, v{T+7}\nv_add_u32 v{vTr+t}, s{sRing}, v{vTr+t}")
    a(f"s_lshl_b32 s{sT0}, s{sW}, 5\nv_xor_b32 v{vTr8}, s{sT0}, v{T+7}\nv_add_u32 v{vTr8}, {RB}, v{vTr8}\nv_add_u32 v{vTr8+1}, {2*NS*4096}, v{vTr8}")
    a(f"v_lshl_add_u32 v{T+7}, v{q}, 9, v{T+6}")
    a(f"s_and_b32 s{sT0}, s{sW}, 1\ns_mul_i32 s{sT1}, s{sT0}, 6144\ns_add_u32 s{sT1}, s{sT1}, {VB}")
    for t in range(4):
        a(f"v_xor_b32 v{vVrd+t}, {32*t}, v{T+7}\nv_add_u32 v{vVrd+t}, s{sT1}, v{vVrd+t}")
    a(f"v_lshrrev_b32 v{T+6}, 1, v{m}\nv_xor_b32 v{T+6}, v{T+6}, v{q}\nv_lshlrev_b32 v{T+6}, 4, v{T+6}\nv_lshl_add_u32 v{vXrd}, v{m}, 7, v{T+6}\nv_xor_b32 v{vXrd+1}, 64, v{vXrd}")
    a(f"s_lshl_b32 s{sT0}, s{sT0}, 3\nv_lshrrev_b32 v{T+6}, 1, v{q}\nv_or_b32 v{T+6}, s{sT0}, v{T+6}\nv_xor_b32 v{T+6}, v{T+6}, v{m}\nv_lshlrev_b32 v{T+6}, 4, v{T+6}")
    a(f"v_lshl_add_u32 v{T+6}, v{m}, 8, v{T+6}\nv_and_b32 v{T+7}, 1, v{q}\nv_lshl_add_u32 v{T+6}, v{T+7}, 3, v{T+6}")
    for fe in range(4):
        a(f"v_xor_b32 v{vKrd+fe}, {32*fe}, v{T+6}\nv_add_u32 v{vKrd+fe}, {KB}, v{vKrd+fe}")
    a(f"v_lshlrev_b32 v{vLin}, 4, v0")
    a(f"s_mul_i32 s{sT0}, s{sW}, 9216\nv_add_u32 v{vSw}, s{sT0}, v{vLin}\ns_xor_b32 s{sT1}, s{sW}, 1\ns_mul_i32 s{sT1}, s{sT1}, 9216\nv_add_u32 v{vSr}, s{sT1}, v{vLin}")
    a(f"s_and_b32 s{sT0}, s{sW}, 1\ns_lshl_b32 s{sT0}, s{sT0}, 3\ns_lshr_b32 s{sT1}, s{sW}, 1\ns_lshl_b32 s{sT1}, s{sT1}, 10\ns_add_u32 s{sT0}, s{sT0}, s{sT1}\nv_add_u32 v{vSt8}, s{sT0}, v{vLin}")
    for i in range(4): a(f"v_mov_b32 v{ONES+i}, 0x3f803f80")
    a(f"s_mov_b32 s{sScale}, 0x3e0293ee")

    def w_reads(j):
        out = []
        base = WF + 16*(j & 1); slot = j % NS
        for t in range(4):
            for hf in range(2):
                out.append(I(f"ds_read_b64_tr_b16 {vr(base+4*t+2*hf,2)}, v{vTr+t} offset:{slot*4096+hf*512}", tag=f"r{j}"))
        return out
    def x_reads(j):
        base = XF + 12*(j & 1)
        return [I(f"ds_read_b128 {vr(base+4*rt,4)}, v{vXrd+(j&1)} offset:{XB+(j>>1)*6144+rt*2048}", tag=f"r{j}") for rt in range(3)]
    def g1_mfma(j):
        out = []
        for t in range(4):
            for rt in range(3):
                d = vr(ACC + 4*(3*t+rt), 4)
                out.append(mfma(d, vr(WF+16*(j&1)+4*t, 4), vr(XF+12*(j&1)+4*rt, 4), "0" if j == 0 else None))
        return out
    kf_reads = [I(f"ds_read_b64 {ar(aKF+8*u+4*f+2*e,2)}, v{vKrd+2*f+e} offset:{4096*u}", tag="kf") for u in range(3) for f in range(2) for e in range(2)]
    vf_reads = [I(f"ds_read_b64_tr_b16 {ar(aVF+6*t+2*u,2)}, v{vVrd+t} offset:{2048*u}", tag="vf") for t in range(4) for u in range(3)]

    a(W(vm="b0")); a("s_barrier")
    if ST: stamp(a, 2)
    a(x_reads(0) + w_reads(0)); a(W(lg=0)); a(dma_block(NS))
    for j in range(18):
        mm = g1_mfma(j)
        if j < 17:
            pre = [W(vm=f"b{j+1}")]
            if j == 13: pre.append(I("s_barrier"))
            rd = x_reads(j+1) + w_reads(j+1)
            if j == 14: rd += kf_reads
            if j == 15: rd += vf_reads
            a(pre)
            a(interleave(mm, rd, per=2 if j in (14, 15) else 1))
            a(W(lg=0))
            nb = j + 1 + NS
            a(dma_block(nb))
        else:
            a(mm)
    if ST: stamp(a, 3)
    for rt in range(3):
        for f in range(2):
            for h in range(2):
                src = ACC + 4*(3*(2*f+h)+rt)
                a(f"v_cvt_pk_bf16_f32 v{QF+8*rt+4*f+2*h}, v{src}, v{src+1}\nv_cvt_pk_bf16_f32 v{QF+8*rt+4*f+2*h+1}, v{src+2}, v{src+3}")
    for f in range(2):
        for rt in range(3):
            for u in range(3):
                a(mfma(vr(S1+12*rt+4*u, 4), ar(aKF+8*u+4*f, 4), vr(QF+8*rt+4*f, 4), "0" if f == 0 else None))
    for i in range(9):
        a(f"ds_write_b128 v{vSw}, {vr(S1+4*i,4)} offset:{SB+1024*i}", tag="sw")
    a(W(lg=0)); a("s_barrier")
    for i in range(9):
        a(f"ds_read_b128 {vr(S2+4*i,4)}, v{vSr} offset:{SB+1024*i}", tag=f"sr{i//3}")
    for rt in range(3):
        a(W(lg=f"sr{rt}"))
        for i in range(12):
            a(f"v_add_f32 v{S1+12*rt+i}, v{S1+12*rt+i}, v{S2+12*rt+i}")
    for rt in range(3):
        s = S1 + 12*rt; mx = T + rt
        a(f"v_max3_f32 v{mx}, v{s}, v{s+1}, v{s+2}")
        for i in range(3, 11, 2): a(f"v_max3_f32 v{mx}, v{mx}, v{s+i}, v{s+i+1}")
        a(f"v_max_f32 v{mx}, v{mx}, v{s+11}")
    for sw in ("v_permlane32_swap_b32", "v_permlane16_swap_b32"):
        for rt in range(3): a(f"v_mov_b32 v{T+3+rt}, v{T+rt}")
        for rt in range(3): a(f"{sw} v{T+rt}, v{T+3+rt}")
        for rt in range(3): a(f"v_max_f32 v{T+rt}, v{T+rt}, v{T+3+rt}")
    for rt in range(3): a(f"v_mul_f32 v{T+rt}, s{sScale}, v{T+rt}")
    def softmax_rt(rt):
        s = S1 + 12*rt; pf = PF + 8*rt; out = []
        for i in range(12): out.append(I(f"v_fma_f32 v{s+i}, v{s+i}, s{sScale}, -v{T+rt}"))
        for i in range(12): out.append(I(f"v_exp_f32 v{s+i}, v{s+i}"))
        out.append(I(f"v_mov_b32 v{pf+4}, 0")); out.append(I(f"v_mov_b32 v{pf+5}, 0"))
        for i in range(4): out.append(I(f"v_cvt_pk_bf16_f32 v{pf+i}, v{s+2*i}, v{s+2*i+1}"))
        for i in range(2): out.append(I(f"v_cvt_pk_bf16_f32 v{pf+6+i}, v{s+8+2*i}, v{s+9+2*i}"))
        return out
    def pv_rt(rt):
        pf = PF + 8*rt; out = []
        out.append(mfma(vr(SUM+4*rt, 4), vr(ONES, 4), vr(pf, 4), "0"))
        for t in range(4): out.append(mfma(vr(ACC+4*(3*t+rt), 4), ar(aVF+6*t, 4), vr(pf, 4), "0"))
        out.append(mfma(vr(SUM+4*rt, 4), vr(ONES, 4), vr(pf+4, 4)))
        for t in range(4): out.append(mfma(vr(ACC+4*(3*t+rt), 4), ar(aVF+6*t+2, 4), vr(pf+4, 4)))
        return out
    def norm_rt(rt):
        out = [I(f"v_rcp_f32 v{T+3+rt}, v{SUM+4*rt}")]
        for t in range(4):
            o = ACC + 4*(3*t+rt)
            for i in range(4): out.append(I(f"v_mul_f32 v{o+i}, v{o+i}, v{T+3+rt}"))
        for f in range(2):
            for h in range(2):
                src = ACC + 4*(3*(2*f+h)+rt)
                out.append(I(f"v_cvt_pk_bf16_f32 v{QF+8*rt+4*f+2*h}, v{src}, v{src+1}"))
                out.append(I(f"v_cvt_pk_bf16_f32 v{QF+8*rt+4*f+2*h+1}, v{src+2}, v{src+3}"))
            out.append(I(f"ds_write_b128 v{vSr}, {vr(QF+8*rt+4*f,4)} offset:{SB+1024*(3*f+rt)}", tag="ow"))
        return out
    a(softmax_rt(0))
    a(interleave(softmax_rt(1), pv_rt(0), start=1, every=3))
    a(interleave(softmax_rt(2), pv_rt(1), start=1, every=3))
    a(interleave(norm_rt(0), pv_rt(2), start=1, every=2))
    a(norm_rt(1)); a(norm_rt(2))
    a(W(vm="b19", lg=0)); a("s_barrier")
    if ST: stamp(a, 4)
    def of_read(ks, rt):
        return I(f"ds_read_b128 {ar(aOF+12*ks+4*rt,4)}, v{vLin} offset:{SB+9216*((ks>>1)^1)+1024*(3*(ks&1)+rt)}", tag=f"of{ks}")
    def w8_read(ks, hf):
        wv = ks >> 1; slot = (18 + (ks & 1)) % NS
        return I(f"ds_read_b64_tr_b16 {ar(aW8+4*ks+2*hf,2)}, v{vTr8+(wv>>1)} offset:{(wv&1)*NS*4096+slot*4096+hf*512}", tag=f"of{ks}")
    def c8_reads(ks): return [w8_read(ks, 0), w8_read(ks, 1)] + [of_read(ks, rt) for rt in range(3)]
    def c8_mfma(ks): return [mfma(vr(ACC8+4*rt, 4), ar(aW8+4*ks, 4), ar(aOF+12*ks+4*rt, 4), "0" if ks == 0 else None) for rt in range(3)]
    a(c8_reads(0) + c8_reads(1))
    for ks in range(8):
        if ks + 2 < 8: a(c8_reads(ks+2))
        elif ks == 6:
            a(W(vm="b20")); a(w_reads(20))
        a(W(lg=f"of{ks}"))
        a(c8_mfma(ks))
    a(W(lg=0)); a("s_barrier")
    a(dma_block(23)); a(dma_block(24)); a(dma_block(25))
    def g2_mfma(j):
        ks = (j - 20) % 8; acc = ACC if j < 28 else ACC2
        return [mfma(vr(acc+4*(3*t+rt), 4), vr(WF+16*(j&1)+4*t, 4), ar(aOF+12*ks+4*rt, 4), "0" if ks == 0 else None) for t in range(4) for rt in range(3)]
    def epi8():
        out = []
        for rt in range(3):
            out.append(I(f"v_cvt_pk_bf16_f32 v{T+2*rt}, v{ACC8+4*rt}, v{ACC8+4*rt+1}"))
            out.append(I(f"v_cvt_pk_bf16_f32 v{T+2*rt+1}, v{ACC8+4*rt+2}, v{ACC8+4*rt+3}"))
        for rt in range(3):
            out.append(I(f"s_add_u32 s{sT0}, s{sPart}, {(48+2*rt)*1024}"))
            out.append(I(f"buffer_store_dwordx2 {vr(T+2*rt,2)}, v{vSt8}, s[{sWS}:{sWS+3}], s{sT0} offen {sp}", tag="st"))
        return out
    def epi(acc, second):
        out = [I(f"s_mul_i32 s{sT1}, s{sW}, 6144"), I(f"s_add_u32 s{sT1}, s{sT1}, s{sPart}")]
        if second: out.append(I(f"s_add_u32 s{sT1}, s{sT1}, {4*6144}"))
        out.append(I(f"s_add_u32 s{sT2}, s{sT1}, 4096"))
        for rt in range(3):
            for pp in range(2):
                d = QF + 8*rt + 4*pp
                for h in range(2):
                    src = acc + 4*(3*(2*pp+h)+rt)
                    out.append(I(f"v_cvt_pk_bf16_f32 v{d+2*h}, v{src}, v{src+1}"))
                    out.append(I(f"v_cvt_pk_bf16_f32 v{d+2*h+1}, v{src+2}, v{src+3}"))
                idx = 2*rt + pp
                so, io = (sT1, idx*1024) if idx < 4 else (sT2, (idx-4)*1024)
                out.append(I(f"buffer_store_dwordx4 {vr(d,4)}, v{vLin}, s[{sWS}:{sWS+3}], s{so} offen offset:{io} {sp}", tag="st"))
        return out
    e1 = epi(ACC, False)
    for j in range(20, 36):
        mm = g2_mfma(j)
        extra = []
        if j == 21: extra = epi8()
        if j == 29: extra = e1[:17]
        if j == 30: extra = e1[17:]
        if j < 35:
            a(W(vm=f"b{j+1}"))
            a(interleave(mm, w_reads(j+1) + extra, per=2 if extra else 1))
            a(W(lg=0))
            nb = j + 1 + NS
            if nb < 36: a(dma_block(nb))
        else:
            a(mm)
    if ST: stamp(a, 5)
    a(epi(ACC2, True))
    if ST:
        a(W(vm=0)); stamp(a, 6)
        store_stamps(a, 0, 7, sWS, sW, sT0)
    a("L_end1:\ns_endpgm")

def k2(a, P):
    ST = P.get("stamps")
    a.begin_kernel("gqa_reduce_kernel", 216, 256, 0, 96, 96)
    if ST: stamp(a, 7)
    a("s_cmp_ge_u32 s2, 216\ns_cbranch_scc1 L_end2")
    a(f"s_load_dwordx2 s[40:41], s[0:1], {OFF['ws']}\ns_load_dwordx2 s[20:21], s[0:1], {OFF['out']}")
    a(f"s_mov_b32 s42, {SZ['ws']}\ns_mov_b32 s43, 0x00020000\ns_mov_b32 s22, {SZ['out']}\ns_mov_b32 s23, 0x00020000")
    a("v_lshrrev_b32 v1, 6, v0\nv_and_b32 v0, 63, v0\nv_readfirstlane_b32 s44, v1")
    a("s_lshl_b32 s45, s2, 2\ns_add_u32 s45, s45, s44")
    a(f"s_mul_i32 s46, s45, 1214\ns_lshr_b32 s46, s46, 16")
    a("s_mul_i32 s47, s46, 54\ns_sub_u32 s47, s45, s47")
    a(f"s_mul_i32 s48, s46, {16*55296}\ns_lshl_b32 s49, s47, 10\ns_add_u32 s48, s48, s49")
    a("v_lshlrev_b32 v2, 4, v0")
    a(W(lg=0))
    for g in range(16):
        a(f"buffer_load_dwordx4 {vr(16+4*g,4)}, v2, s[40:43], s48 offen {P.get('lpol','')}", tag=f"g{g}")
        if g < 15: a("s_add_u32 s48, s48, 55296")
    a("v_lshrrev_b32 v3, 4, v0\nv_and_b32 v4, 15, v0\nv_lshrrev_b32 v5, 2, v4\nv_and_b32 v6, 3, v0")
    a("v_cmp_eq_u32 vcc, v3, v5\nv_mov_b32 v7, 0x3f80\nv_and_b32 v8, 1, v0\nv_lshlrev_b32 v8, 4, v8\nv_lshlrev_b32 v7, v8, v7\nv_cndmask_b32 v7, 0, v7, vcc")
    a("v_cmp_gt_u32 vcc, 2, v6\nv_mov_b32 v8, 0\nv_mov_b32 v9, 0\nv_cndmask_b32 v10, 0, v7, vcc\nv_cndmask_b32 v11, v7, v8, vcc\nv_mov_b32 v12, 0\nv_mov_b32 v13, 0")
    a("s_mul_i32 s50, s47, 43\ns_lshr_b32 s50, s50, 8\ns_mul_i32 s51, s50, 6\ns_sub_u32 s51, s47, s51")
    a(f"s_lshr_b32 s52, s51, 1\ns_and_b32 s51, s51, 1\ns_mul_i32 s52, s52, {16*1152}\ns_lshl_b32 s51, s51, 6\ns_lshl_b32 s50, s50, 7")
    a("s_mul_i32 s53, s46, 55296\ns_add_u32 s53, s53, s52\ns_add_u32 s53, s53, s51\ns_add_u32 s53, s53, s50")
    a("v_mul_u32_u24 v4, 1152, v4\nv_lshl_add_u32 v4, v3, 3, v4")
    for g in range(16):
        a(W(vm=f"g{g}"))
        a(mfma("v[80:83]", "v[10:13]", vr(16+4*g, 4), "0" if g == 0 else None))
        a(mfma("v[84:87]", "v[8:11]", vr(16+4*g, 4), "0" if g == 0 else None))
    if ST: stamp(a, 8)
    a("v_cvt_pk_bf16_f32 v88, v80, v81\nv_cvt_pk_bf16_f32 v89, v82, v83\nv_cvt_pk_bf16_f32 v90, v84, v85\nv_cvt_pk_bf16_f32 v91, v86, v87")
    a("buffer_store_dwordx2 v[88:89], v4, s[20:23], s53 offen\nbuffer_store_dwordx2 v[90:91], v4, s[20:23], s53 offen offset:32")
    if ST:
        a(W(vm=0)); stamp(a, 9)
        store_stamps(a, 7, 10, 40, 44, 47)
    a("L_end2:\ns_endpgm")

def gen(**P):
    a = Asm()
    k1(a, P); k2(a, P)
    a(".fill 4160, 4, 0xbf800000")
    t = a.text()
    return t

if __name__ == "__main__":
    out = sys.argv[1]
    P = {}
    for kv in sys.argv[2:]:
        k, v = kv.split("=")
        P[k] = int(v) if v.lstrip("-").isdigit() else v.replace("+", " ")
    open(out, "w").write(gen(**P))
```
